```python
import torch

def _softmax(x, axis=-1):
    return torch.softmax(x, dim=axis)
def _gelu(x):
    return torch.nn.functional.gelu(x, approximate="tanh")
def _silu(x):
    return torch.nn.functional.silu(x)
def _sigmoid(x):
    return torch.sigmoid(x)
def _layernorm(x, axis=-1, eps=1e-5):
    m = x.mean(dim=axis, keepdim=True)
    v = x.var(dim=axis, keepdim=True, unbiased=False)
    return (x - m) / torch.sqrt(v + eps)
def _scatter_add(tgt, idx, src, axis=0):
    return tgt.clone().index_add_(axis, idx, src)
def _segment_sum(src, seg, n):
    out = torch.zeros((n,) + src.shape[1:], dtype=src.dtype)
    return out.index_add_(0, seg, src)
def _pad(x, pw):
    flat = tuple(v for pair in reversed(pw) for v in pair)
    return torch.nn.functional.pad(x, flat)

kernel_name = 'gather_scatter__edge_featured_mpnn_egc__graph'

def setup_inputs():

    _w = (lambda a: (lambda t: t.to(torch.bfloat16) if t.is_floating_point() else t)(torch.as_tensor(a)))
    N, deg, D, De = 25000, 32, 64, max(0, 1)
    E = N * deg
    return {
        "x": _w((lambda *s: torch.randn(*s, dtype=torch.bfloat16) * 0.2)(N, D)),
        "e_attr": _w((lambda *s: torch.randn(*s, dtype=torch.bfloat16) * 0.2)(E, De)),
        "src": _w((lambda lo, hi, *s: torch.randint(lo, hi, s))(0, N, E).to(torch.int64)),
        "dst": _w((lambda lo, hi, *s: torch.randint(lo, hi, s))(0, N, E).to(torch.int64)),
        "u_w": _w((lambda *s: torch.randn(*s, dtype=torch.bfloat16) * 0.05)(D, D)),
        "v_w": _w((lambda *s: torch.randn(*s, dtype=torch.bfloat16) * 0.05)(D, D)),
        "g_w": _w((lambda *s: torch.randn(*s, dtype=torch.bfloat16) * 0.2)(2 * D + De, D)),
    }

def reference(x, e_attr, src, dst, u_w, v_w, g_w):
    N, D = x.shape
    g_in = torch.concatenate([x[dst], x[src], e_attr], axis=-1)
    eta = _sigmoid(g_in @ g_w)
    hv = x @ v_w
    msg = eta * hv[src]
    agg = _segment_sum(msg, dst, N)
    return _silu(x @ u_w + agg)
```

```python
import sys, struct

DIAG = '--diag' in sys.argv
OUT = [a for a in sys.argv[1:] if not a.startswith('--')]
OUT = OUT[0] if OUT else 'gather_scatter__edge_featured_mpnn_egc__graph.s'

N = 25000
E = 800000
NB = 196
NBK = 128
EW = 250
CH = 3200
CAP = 64
NW = 196
MAGIC, MSH = 10700, 21
assert all((d * MAGIC) >> MSH == d // NB for d in range(N))
XBYTES = N * 128
T_OFF = [0, 0x320000]
CNT_OFF = 0x700000
SEG_OFF = 0x800000
SEGB = EW * CAP * 8
DIAG_OFF = 0x4000000
NLOG2E = struct.unpack('<I', struct.pack('<f', -1.4426950408889634))[0]

L = []
def emit(s=''):
    L.append(s)
def I(s):
    L.append('    ' + s)
def lab(s):
    L.append(s + ':')
def vr(a, n=1):
    return f'v{a}' if n == 1 else f'v[{a}:{a+n-1}]'
def sr(a, n=1):
    return f's{a}' if n == 1 else f's[{a}:{a+n-1}]'

def srd(d, base, off, nrec, off_sreg=None):
    if off_sreg is not None:
        I(f's_add_u32 s{d}, s{base}, {off_sreg}')
        I(f's_addc_u32 s{d+1}, s{base+1}, 0')
        if off:
            I(f's_add_u32 s{d}, s{d}, {off:#x}')
            I(f's_addc_u32 s{d+1}, s{d+1}, 0')
    elif off:
        I(f's_add_u32 s{d}, s{base}, {off:#x}')
        I(f's_addc_u32 s{d+1}, s{base+1}, 0')
    else:
        I(f's_mov_b32 s{d}, s{base}')
        I(f's_mov_b32 s{d+1}, s{base+1}')
    I(f's_mov_b32 s{d+2}, {nrec}')
    I(f's_mov_b32 s{d+3}, 0x20000')

STAMP_V = 15
def stamp(idx, st=98):
    if not DIAG:
        return
    I(f's_memrealtime s[{st}:{st+1}]')
    I('s_waitcnt lgkmcnt(0)')
    I(f'v_writelane_b32 v{STAMP_V}, s{st}, {idx}')

def stamp_store(kidx, ws, wg_sreg, waves, d):
    if not DIAG:
        return
    I('s_mov_b64 exec, -1')
    srd(d, ws, DIAG_OFF + kidx * 0x100000, 0x100000)
    I('v_and_b32 v1, 63, v0')
    I('v_lshrrev_b32 v2, 6, v0')
    I('v_lshlrev_b32 v2, 6, v2')
    I('v_lshl_add_u32 v2, v1, 2, v2')
    I(f's_lshl_b32 s98, {wg_sreg}, 10')
    I('v_cmp_gt_u32 vcc, 16, v1')
    I('s_and_b64 exec, exec, vcc')
    I(f'buffer_store_dword v{STAMP_V}, v2, s[{d}:{d+3}], s98 offen')

header = '''; Kernarg layout for this problem (80 bytes, ptrs only, base s[0:1]):
;                T[half][node][32] = { x@v_w (high half) , -log2e * x@g_w[64:128] (f16, low half) }
'''

K1_LDS = 512 + NBK * 528
L_CNT, L_INFO, L_MISC, L_P, L_ACC, L_REC = 0, 1024, 3072, 4096, 32768, 61440
CHMAX = 1024
L_W = L_REC + CHMAX * 64
K2_LDS = L_W + 16384

def gen_k1():
    emit('.globl bin_kernel')
    emit('.p2align 8')
    emit('.type bin_kernel,@function')
    lab('bin_kernel')
    I(f's_cmp_ge_u32 s2, {EW + NW}')
    I('s_cbranch_scc1 k1_end')
    I('s_load_dwordx8 s[4:11], s[0:1], 0')
    I('s_load_dwordx4 s[12:15], s[0:1], 40')
    I('s_load_dwordx2 s[16:17], s[0:1], 72')
    if DIAG:
        I('s_waitcnt lgkmcnt(0)')
        stamp(0)
    I(f's_cmp_ge_u32 s2, {EW}')
    I('s_cbranch_scc1 k1_node')
    DST, SRC, EV, B, RK, REC = 16, 24, 32, 36, 44, 52
    I('v_lshlrev_b32 v1, 4, v0')
    I('v_lshlrev_b32 v2, 3, v0')
    I('v_lshlrev_b32 v3, 2, v0')
    I('v_mov_b32 v4, 0')
    I('v_mov_b32 v5, 1')
    I(f's_mul_i32 s40, s2, {CH*4}')
    I(f's_add_u32 s41, s40, {CH*2}')
    I(f's_mul_i32 s42, s2, {CH*2}')
    I(f's_mov_b32 s43, {MAGIC}')
    I(f's_mov_b32 s44, {-NB}')
    I('s_mov_b32 s45, 528')
    I('v_cmp_gt_u32 vcc, 128, v0')
    I('s_and_saveexec_b64 s[46:47], vcc')
    I('ds_write_b32 v3, v4')
    I('s_mov_b64 exec, s[46:47]')
    I('s_waitcnt lgkmcnt(0)')
    srd(20, 10, 0, E * 4)
    srd(24, 8, 0, E * 4)
    srd(28, 6, 0, E * 2)
    srd(32, 16, SEG_OFF, NBK * SEGB)
    srd(36, 16, CNT_OFF, NBK * 1024)
    I(f'v_cmp_gt_u32 vcc, {CH//8}, v0')
    I('s_and_saveexec_b64 s[46:47], vcc')
    I('s_cbranch_execz k1_e_noload')
    I(f'buffer_load_dwordx4 {vr(DST,4)}, v1, s[20:23], s40 offen')
    I(f'buffer_load_dwordx4 {vr(DST+4,4)}, v1, s[20:23], s41 offen')
    I(f'buffer_load_dwordx4 {vr(SRC,4)}, v1, s[24:27], s40 offen')
    I(f'buffer_load_dwordx4 {vr(SRC+4,4)}, v1, s[24:27], s41 offen')
    I(f'buffer_load_dwordx2 {vr(EV,2)}, v2, s[28:31], s42 offen')
    I(f'buffer_load_dwordx2 {vr(EV+2,2)}, v2, s[28:31], s42 offen offset:{CH}')
    lab('k1_e_noload')
    I('s_barrier')
    I('s_cbranch_execz k1_e_skip')
    for j in range(8):
        if j == 0:
            I('s_waitcnt vmcnt(5)')
            stamp(1)
        if j == 4:
            I('s_waitcnt vmcnt(4)')
        I(f'v_mul_u32_u24 v6, s43, v{DST+j}')
        I(f'v_lshrrev_b32 v{B+j}, {MSH}, v6')
        I(f'v_lshlrev_b32 v7, 2, v{B+j}')
        I(f'ds_add_rtn_u32 v{RK+j}, v7, v5')
        I(f'v_mad_i32_i24 v{DST+j}, v{B+j}, s44, v{DST+j}')
    I('s_waitcnt vmcnt(0)')
    for j in range(8):
        I(f'v_lshlrev_b32 v6, 7, v{SRC+j}')
        I(f'v_lshl_or_b32 v{REC+2*j}, v{DST+j}, 24, v6')
        if j % 2 == 0:
            I(f'v_lshlrev_b32 v{REC+2*j+1}, 16, v{EV+j//2}')
        else:
            I(f'v_and_b32 v{REC+2*j+1}, 0xffff0000, v{EV+j//2}')
    for j in range(8):
        I(f's_waitcnt lgkmcnt({min(7, 7)})' if j == 0 else f's_waitcnt lgkmcnt(7)')
        I(f'v_min_u32 v6, {CAP}, v{RK+j}')
        I('v_lshlrev_b32 v6, 3, v6')
        I(f'v_mad_u32_u24 v6, v{B+j}, s45, v6')
        I(f'ds_write_b64 v6, {vr(REC+2*j,2)} offset:512')
    lab('k1_e_skip')
    I('s_mov_b64 exec, -1')
    I('v_lshrrev_b32 v6, 3, v0')
    I('v_and_b32 v7, 7, v0')
    I('v_lshlrev_b32 v7, 4, v7')
    I('v_lshlrev_b32 v8, 2, v6')
    I('v_mad_u32_u24 v9, v6, s45, v7')
    I(f's_mov_b32 s48, {SEGB}')
    I('v_mad_u32_u24 v10, v6, s48, v7')
    I('v_lshlrev_b32 v11, 10, v0')
    I('s_lshl_b32 s49, s2, 9')
    I(f's_add_u32 s50, s49, {64*SEGB}')
    I('s_lshl_b32 s51, s2, 2')
    I('s_waitcnt lgkmcnt(0)')
    I('s_barrier')
    stamp(2)
    I('ds_read2_b32 v[12:13], v8 offset0:0 offset1:64')
    I('ds_read_b32 v14, v3')
    D = 16
    order = [(0, 0), (1, 0), (0, 1), (1, 1), (0, 2), (1, 2), (0, 3), (1, 3)]
    for k, (r, it) in enumerate(order):
        I(f'ds_read_b128 {vr(D+4*k,4)}, v9 offset:{512 + r*64*528 + it*128}')
    I('s_waitcnt lgkmcnt(8)')
    I('v_cmp_gt_u32 vcc, 128, v0')
    I('s_and_saveexec_b64 s[46:47], vcc')
    I('s_cbranch_execz k1_e_nocnt')
    I('buffer_store_dword v14, v11, s[36:39], s51 offen')
    lab('k1_e_nocnt')
    for k, (r, it) in enumerate(order):
        I('s_mov_b64 exec, -1')
        I(f'v_cmp_lt_u32 vcc, {16*it}, v{12+r}')
        I(f's_waitcnt lgkmcnt({7-k})')
        I('s_and_b64 exec, exec, vcc')
        I(f's_cbranch_execz k1_e_st{k}')
        I(f'buffer_store_dwordx4 {vr(D+4*k,4)}, v10, s[32:35], s{49+r} offen offset:{it*128}')
        lab(f'k1_e_st{k}')
    if DIAG:
        I('s_mov_b64 exec, -1')
        stamp(3)
        I('s_waitcnt vmcnt(0)')
        stamp(4)
        stamp_store(0, 16, 's2', 8, 20)
    I('s_endpgm')

    lab('k1_node')
    XS, WQ, WV = 0, 16384, 24576
    A, BQ, BV, DQ, DV = 16, 32, 48, 64, 80
    I(f's_sub_u32 s40, s2, {EW}')
    I('s_lshl_b32 s41, s40, 14')
    I('s_add_u32 s42, s41, 8192')
    I('v_lshlrev_b32 v1, 4, v0')
    I('v_lshrrev_b32 v2, 6, v0')
    I('v_lshrrev_b32 v3, 4, v0')
    I('v_readfirstlane_b32 s43, v2')
    I('v_and_b32 v3, 7, v3')
    I('v_lshlrev_b32 v3, 4, v3')
    I('v_xor_b32 v3, v3, v1')
    I('s_waitcnt lgkmcnt(0)')
    srd(20, 4, 0, XBYTES)
    srd(24, 14, 64 * 128, 8192)
    srd(28, 12, 0, 8192)
    I(f'buffer_load_dwordx4 v[16:19], v1, s[20:23], s41 offen')
    I(f'buffer_load_dwordx4 v[20:23], v1, s[20:23], s42 offen')
    I(f'buffer_load_dwordx4 v[24:27], v1, s[24:27], 0 offen')
    I(f'buffer_load_dwordx4 v[28:31], v1, s[28:31], 0 offen')
    I('s_and_b32 s44, s43, 1')
    I('s_lshr_b32 s45, s43, 1')
    I(f's_mul_i32 s46, s44, {T_OFF[1]}')
    srd(32, 16, 0, XBYTES, off_sreg='s46')
    I('v_and_b32 v4, 31, v0')
    I('v_bfe_u32 v5, v0, 5, 1')
    I('v_bfe_u32 v6, v0, 1, 3')
    I('v_xor_b32 v6, v6, v5')
    I('v_lshlrev_b32 v6, 4, v6')
    I('v_lshl_add_u32 v6, v4, 7, v6')
    I('s_lshl_b32 s47, s45, 12')
    I('v_add_u32 v6, s47, v6')
    I('v_xor_b32 v7, 32, v6')
    I('v_xor_b32 v8, 64, v6')
    I('v_xor_b32 v9, 0x60, v6')
    I('v_bfe_u32 v10, v0, 2, 2')
    I('v_lshl_add_u32 v10, v5, 3, v10')
    I('v_lshlrev_b32 v10, 7, v10')
    I('v_bfe_u32 v11, v0, 4, 1')
    I('v_lshl_add_u32 v10, v11, 5, v10')
    I('v_and_b32 v11, 3, v0')
    I('v_lshl_add_u32 v10, v11, 3, v10')
    I('s_lshl_b32 s48, s44, 6')
    I('v_add_u32 v10, s48, v10')
    I('v_lshlrev_b32 v12, 2, v4')
    I('v_lshl_add_u32 v12, v5, 9, v12')
    I('s_add_u32 s49, s41, s47')
    I(f's_mov_b32 s50, {NLOG2E:#x}')
    I('s_mov_b32 s51, 0x07060100')
    I('s_waitcnt vmcnt(3)')
    stamp(1)
    I(f'ds_write_b128 v3, v[16:19] offset:{XS}')
    I('s_waitcnt vmcnt(2)')
    I(f'ds_write_b128 v3, v[20:23] offset:{XS+8192}')
    I('s_waitcnt vmcnt(1)')
    I(f'ds_write_b128 v1, v[24:27] offset:{WQ}')
    I('s_waitcnt vmcnt(0)')
    I(f'ds_write_b128 v1, v[28:31] offset:{WV}')
    I('s_waitcnt lgkmcnt(0)')
    I('s_barrier')
    stamp(2)
    for s in range(4):
        I(f'ds_read_b128 {vr(A+4*s,4)}, v{6+s} offset:{XS}')
    for s in range(4):
        I(f'ds_read_b64_tr_b16 {vr(BQ+4*s,2)}, v10 offset:{WQ + s*2048}')
        I(f'ds_read_b64_tr_b16 {vr(BQ+4*s+2,2)}, v10 offset:{WQ + s*2048 + 512}')
    I('s_waitcnt lgkmcnt(0)')
    for s in range(4):
        I(f'ds_read_b64_tr_b16 {vr(BV+4*s,2)}, v10 offset:{WV + s*2048}')
        I(f'ds_read_b64_tr_b16 {vr(BV+4*s+2,2)}, v10 offset:{WV + s*2048 + 512}')
    for s in range(4):
        I(f'v_mfma_f32_32x32x16_bf16 {vr(DQ,16)}, {vr(A+4*s,4)}, {vr(BQ+4*s,4)}, {"0" if s == 0 else vr(DQ,16)}')
    I('s_waitcnt lgkmcnt(0)')
    for s in range(4):
        I(f'v_mfma_f32_32x32x16_bf16 {vr(DV,16)}, {vr(A+4*s,4)}, {vr(BV+4*s,4)}, {"0" if s == 0 else vr(DV,16)}')
    I('s_nop 7')
    for r in range(16):
        I(f'v_fma_mixlo_f16 v{DQ+r}, v{DQ+r}, s50, 0')
    for r in range(16):
        I(f'v_add_f32 v{DV+r}, 0, v{DV+r}')
        I(f'v_add_u32 v{DV+r}, 0x8000, v{DV+r}')
        I(f'v_sub_u32_sdwa v{DV+r}, v{DV+r}, v{DQ+r} clamp dst_sel:DWORD dst_unused:UNUSED_PAD src0_sel:DWORD src1_sel:WORD_0')
        I(f'v_perm_b32 v{DV+r}, v{DV+r}, v{DQ+r}, s51')
        I(f'buffer_store_dword v{DV+r}, v12, s[32:35], s49 offen offset:{(8*(r//4) + r%4)*128}')
    if DIAG:
        stamp(3)
        I('s_waitcnt vmcnt(0)')
        stamp(4)
        stamp_store(0, 16, 's2', 8, 20)
    lab('k1_end')
    I('s_endpgm')

vLO = 1
vC = 2
vCHK = 6
vRA = 8
vONE = 9
vW = 16
vR = [48, 64]
vP = [80, 84]
vAD = [88, 89]
vT = [90, 94]
vN, vD, vTT = 98, 102, 106
vGA = [110, 111]
sT, sX, sSEG, sCN, sWM, sCW, sOUT = 24, 28, 32, 36, 40, 44, 48
sMASK = 52
sMODE, sN0, sWAVE, sBATCH = 3, 22, 23, 84
sG, sNCUR, sNNXT, sGTOT, sGF8, sAMASK = 85, 86, 87, 88, 89, 90
sY = 92
sTOTF = 94
sTMP = 95

def nsteps(dst, g):
    I(f's_lshl_b32 s{sTMP}, s{g}, 3')
    I(f's_mov_b32 s{dst}, 8')
    I(f's_sub_u32 s{sTMP}, s{sTMP}, s{sTOTF}')
    lbl = f'k2_ns_{len(L)}'
    I(f's_cbranch_scc1 {lbl}')
    I(f's_mov_b32 s{dst}, 0')
    for l in range(7):
        I(f's_bfe_u32 s{sTMP+1}, s{sY + l//4}, {(8 << 16) | (8*(l%4)):#x}')
        I(f's_cmp_lt_u32 s{sTMP}, s{sTMP+1}')
        I(f's_addc_u32 s{dst}, s{dst}, 0')
    lab(lbl)

def issue_load(t, rset, k):
    I(f'v_and_or_b32 v{vGA[k]}, v{vR[rset]+2*t}, s{sAMASK}, v{vLO}')
    I(f'buffer_load_dwordx4 {vr(vW+4*t,4)}, v{vGA[k]}, s[{sT}:{sT+3}], 0 offen')

def gate_arg(t, cur):
    T = vT[t % 2]
    e = vR[cur] + 2 * t
    for h in range(2):
        I(f'v_pk_fma_f32 {vr(T+2*h,2)}, {vr(e,2)}, {vr(vC+2*h,2)}, {vr(vP[cur]+2*h,2)} op_sel:[1,0,0] op_sel_hi:[1,1,1]')

def gate_exp(t):
    T = vT[t % 2]
    for j in range(4):
        I(f'v_fma_mix_f32 v{T+j}, v{vW+4*t+j}, 1.0, v{T+j} op_sel_hi:[1,0,0]')
    for j in range(4):
        I(f'v_exp_f32 v{T+j}, v{T+j}')

def frac(t, nsrc):
    T = vT[t % 2]
    W = vW + 4 * t
    for h in range(2):
        I(f'v_pk_fma_f32 {vr(vTT+2*h,2)}, {vr(W+2*h,2)}, {vr(vD+2*h,2)}, {vr(nsrc+2*h,2)}')
    for h in range(2):
        I(f'v_pk_fma_f32 {vr(vD+2*h,2)}, {vr(vD+2*h,2)}, {vr(T+2*h,2)}, {vr(vD+2*h,2)}')
    for h in range(2):
        I(f'v_pk_fma_f32 {vr(vN+2*h,2)}, {vr(nsrc+2*h,2)}, {vr(T+2*h,2)}, {vr(vTT+2*h,2)}')

def next_node_addr(nxt):
    I(f'v_lshrrev_b32 v{vAD[nxt]}, 24, v{vR[nxt]}')
    I(f'v_lshl_add_u32 v{vAD[nxt]}, v{vAD[nxt]}, 7, v{vLO}')
    I(f'ds_read_b128 {vr(vP[nxt],4)}, v{vAD[nxt]} offset:{L_P}')

def flush(cur, safe):
    if not safe:
        for j in range(4):
            I(f'v_rcp_f32 v{vTT+j}, v{vD+j}')
        I(f'v_pk_fma_f32 {vr(vCHK,2)}, {vr(vD,2)}, {vr(vD+2,2)}, {vr(vCHK,2)}')
        for h in range(2):
            I(f'v_pk_mul_f32 {vr(vN+2*h,2)}, {vr(vN+2*h,2)}, {vr(vTT+2*h,2)}')
    for j in range(4):
        I(f'ds_add_f32 v{vAD[cur]}, v{vN+j} offset:{L_ACC + 4*j}')
    if not safe:
        I(f'v_pk_fma_f32 {vr(vCHK,2)}, {vr(vN,2)}, {vr(vN+2,2)}, {vr(vCHK,2)}')

def body_v1(cur):
    nxt = 1 - cur
    I('s_waitcnt lgkmcnt(4)')
    I(f'v_add_u32 v{vRA}, 0x2000, v{vRA}')
    next_node_addr(nxt)
    for t in range(8):
        gate_arg(t, cur)
        if t % 2 == 1:
            I(f'ds_read_b128 {vr(vR[cur]+2*(t-1),4)}, v{vRA} offset:{L_REC + 8*(t-1)}')
        I(f's_waitcnt vmcnt({6 if t == 1 else 7})')
        gate_exp(t)
        if t == 0:
            I('s_nop 0')
            for h in range(2):
                I(f'v_pk_add_f32 {vr(vD+2*h,2)}, {vr(vT[0]+2*h,2)}, 1.0 op_sel_hi:[1,0]')
        else:
            frac(t, vW if t == 1 else vN)
            if t == 1:
                issue_load(0, nxt, 0)
            issue_load(t, nxt, 1)
    flush(cur, False)

def body_v2(cur, safe, tag):
    nxt = 1 - cur
    I('s_waitcnt vmcnt(0) lgkmcnt(4)')
    I(f'v_add_u32 v{vRA}, 0x2000, v{vRA}')
    next_node_addr(nxt)
    for t in range(8):
        gate_arg(t, cur)
        gate_exp(t)
        T = vT[t % 2]
        W = vW + 4 * t
        if safe:
            I('s_nop 0')
            for h in range(2):
                I(f'v_pk_add_f32 {vr(T+2*h,2)}, {vr(T+2*h,2)}, 1.0 op_sel_hi:[1,0]')
            for j in range(4):
                I(f'v_rcp_f32 v{T+j}, v{T+j}')
            I('s_nop 0')
            for h in range(2):
                if t == 0:
                    I(f'v_pk_mul_f32 {vr(vN+2*h,2)}, {vr(W+2*h,2)}, {vr(T+2*h,2)}')
                else:
                    I(f'v_pk_fma_f32 {vr(vN+2*h,2)}, {vr(W+2*h,2)}, {vr(T+2*h,2)}, {vr(vN+2*h,2)}')
        elif t == 0:
            for h in range(2):
                I(f'v_pk_mov_b32 {vr(vN+2*h,2)}, {vr(W+2*h,2)}, {vr(W+2*h,2)} op_sel:[0,1]')
            for h in range(2):
                I(f'v_pk_add_f32 {vr(vD+2*h,2)}, {vr(T+2*h,2)}, 1.0 op_sel_hi:[1,0]')
        else:
            frac(t, vN)
        I(f's_cmp_le_u32 s{sNNXT}, {t}')
        I(f's_cbranch_scc1 {tag}_nl{t}')
        issue_load(t, nxt, t % 2)
        lab(f'{tag}_nl{t}')
        if t < 7:
            I(f's_cmp_le_u32 s{sNCUR}, {t+1}')
            I(f's_cbranch_scc1 {tag}_fl')
    lab(f'{tag}_fl')
    for q in range(4):
        I(f'ds_read_b128 {vr(vR[cur]+4*q,4)}, v{vRA} offset:{L_REC + 16*q}')
    flush(cur, safe)

def node_mfma(woff, A, Bf, D, vB):
    for s in range(4):
        I(f'ds_read_b64_tr_b16 {vr(Bf+4*s,2)}, v{vB} offset:{woff + s*1024}')
        I(f'ds_read_b64_tr_b16 {vr(Bf+4*s+2,2)}, v{vB} offset:{woff + s*1024 + 256}')
    I('s_waitcnt lgkmcnt(0)')
    for s in range(4):
        I(f'v_mfma_f32_32x32x16_bf16 {vr(D,16)}, {vr(A+4*s,4)}, {vr(Bf+4*s,4)}, {"0" if s == 0 else vr(D,16)}')
    I('s_nop 12')

def gen_k2():
    emit('.globl agg_kernel')
    emit('.p2align 8')
    emit('.type agg_kernel,@function')
    lab('agg_kernel')
    I(f's_cmp_ge_u32 s2, {2*NBK}')
    I('s_cbranch_scc1 k2_end')
    I('s_load_dwordx16 s[4:19], s[0:1], 0')
    I('s_load_dwordx2 s[20:21], s[0:1], 72')
    I(f's_mov_b32 s{sMODE}, 0')
    I('v_lshrrev_b32 v10, 6, v0')
    I(f'v_and_b32 v{vLO}, 7, v0')
    I(f'v_readfirstlane_b32 s{sWAVE}, v10')
    I(f'v_lshlrev_b32 v{vLO}, 4, v{vLO}')
    I(f'v_mov_b32 v{vONE}, 1')
    I(f's_lshr_b32 s{sTMP}, s2, 1')
    I(f's_mul_i32 s{sN0}, s{sTMP}, {NB}')
    I(f's_mov_b32 s{sAMASK}, 0x3fffff')
    I('s_waitcnt lgkmcnt(0)')
    stamp(0)
    lab('k2_restart')
    REC, RK, AA = 16, 48, 64
    XST, WST, CN0, CRAW, PF = 80, 88, 10, 12, 14
    I(f's_mov_b32 s{sBATCH}, 0')
    I(f's_lshr_b32 s{sTMP}, s2, 1')
    I(f's_mul_i32 s{sTMP+1}, s{sTMP}, {SEGB}')
    srd(sSEG, 20, SEG_OFF, SEGB, off_sreg=f's{sTMP+1}')
    I(f's_lshl_b32 s{sTMP+1}, s{sTMP}, 10')
    srd(sCN, 20, CNT_OFF, EW * 4, off_sreg=f's{sTMP+1}')
    I('v_lshrrev_b32 v90, 3, v0')
    I('v_lshlrev_b32 v91, 2, v90')
    I(f'v_lshl_add_u32 v92, v90, 9, v{vLO}')
    I(f's_mov_b32 s{sTMP+2}, 0x10000')
    I(f's_bitcmp1_b32 s{sMODE}, 0')
    I('s_cbranch_scc1 k2_norec')
    I(f'buffer_load_dword v{CN0}, v91, s[{sCN}:{sCN+3}], 0 offen')
    I(f'buffer_load_dword v{CN0+1}, v91, s[{sCN}:{sCN+3}], 0 offen offset:512')
    for it in range(3):
        for r in range(2):
            so = '0' if r == 0 else f's{sTMP+2}'
            I(f'buffer_load_dwordx4 {vr(REC+4*(2*it+r),4)}, v92, s[{sSEG}:{sSEG+3}], {so} offen offset:{it*128}')
    lab('k2_norec')
    I(f's_lshl_b32 s{sTMP}, s{sN0}, 7')
    I(f's_sub_u32 s{sTMP+1}, {XBYTES}, s{sTMP}')
    I(f's_min_u32 s{sTMP+1}, s{sTMP+1}, {NB*128}')
    srd(sX, 4, 0, f's{sTMP+1}', off_sreg=f's{sTMP}')
    I('v_lshlrev_b32 v93, 4, v0')
    I(f's_mov_b32 s{sTMP+2}, 0x4000')
    I(f'buffer_load_dwordx4 {vr(XST,4)}, v93, s[{sX}:{sX+3}], 0 offen')
    I(f'buffer_load_dwordx4 {vr(XST+4,4)}, v93, s[{sX}:{sX+3}], s{sTMP+2} offen')
    I(f's_cmp_lt_u32 s{sWAVE}, 8')
    I(f's_cselect_b32 s{sWM}, s16, s12')
    I(f's_cselect_b32 s{sWM+1}, s17, s13')
    I(f's_mov_b32 s{sWM+2}, 8192')
    I(f's_mov_b32 s{sWM+3}, 0x20000')
    I('v_and_b32 v94, 63, v90')
    I('v_lshlrev_b32 v94, 7, v94')
    I(f'v_lshrrev_b32 v95, 1, v{vLO}')
    I('v_add_u32 v94, v94, v95')
    I(f's_and_b32 s{sTMP}, s2, 1')
    I(f's_lshl_b32 s{sTMP+1}, s{sTMP}, 6')
    I(f'buffer_load_dwordx2 {vr(WST,2)}, v94, s[{sWM}:{sWM+3}], s{sTMP+1} offen')
    srd(sCW, 16, 128 * 128, 128)
    I(f'buffer_load_dwordx2 {vr(CRAW,2)}, v95, s[{sCW}:{sCW+3}], s{sTMP+1} offen')
    I(f's_mul_i32 s{sTMP+1}, s{sTMP}, {T_OFF[1]}')
    srd(sT, 20, 0, XBYTES, off_sreg=f's{sTMP+1}')
    I(f's_lshr_b32 s{sTMP}, s2, 3')
    I(f's_mul_i32 s{sTMP}, s{sTMP}, {782*128}')
    I('v_min_u32 v96, 781, v0')
    I('v_lshlrev_b32 v96, 7, v96')
    I(f'buffer_load_dword v{PF}, v96, s[{sT}:{sT+3}], s{sTMP} offen')
    I('v_bfe_u32 v97, v0, 4, 3')
    I('v_lshlrev_b32 v97, 4, v97')
    I('v_xor_b32 v97, v97, v93')
    I('v_lshlrev_b32 v98, 3, v0')
    I(f'v_add_u32 v98, {L_W}, v98')
    I(f'v_mov_b32 v{vCHK}, 0')
    I(f'v_mov_b32 v{vCHK+1}, 0')

    lab('k2_batch')
    I('v_lshlrev_b32 v99, 2, v0')
    I('v_mov_b32 v100, 0')
    I('v_lshlrev_b32 v93, 4, v0')
    I(f'v_mov_b32 v104, {(223 << 24) | 0x3fff80:#x}')
    I('v_mov_b32 v105, 0')
    I('v_mov_b32 v106, v104')
    I('v_mov_b32 v107, 0')
    I('ds_write_b32 v99, v100')
    I(f'v_add_u32 v93, {L_REC}, v93')
    for k in range(4):
        I(f'ds_write_b128 v93, v[104:107] offset:{k*16384}')
    I(f's_bitcmp1_b32 s{sMODE}, 0')
    I('s_cbranch_scc1 k2_scanload')
    I('s_waitcnt lgkmcnt(0)')
    I('s_barrier')
    stamp(1)
    I('s_waitcnt vmcnt(11)')
    I(f'v_lshrrev_b32 v101, 3, v{vLO}')
    I(f'v_max_u32 v102, v{CN0}, v{CN0+1}')
    I(f'v_sub_u32 v{CN0}, v{CN0}, v101')
    I(f'v_sub_u32 v{CN0+1}, v{CN0+1}, v101')
    for it in range(4):
        for r in range(2):
            for k in range(2):
                m = sMASK + 2 * (2 * (2 * it + r) + k)
                I(f'v_cmp_lt_i32 s[{m}:{m+1}], {16*it+k}, v{CN0+r}')
    I('v_cmp_lt_u32 vcc, 48, v102')
    I('s_cbranch_vccz k2_noline3')
    I(f's_mov_b32 s{sTMP+2}, 0x10000')
    I(f'buffer_load_dwordx4 {vr(REC+24,4)}, v92, s[{sSEG}:{sSEG+3}], 0 offen offset:384')
    I(f'buffer_load_dwordx4 {vr(REC+28,4)}, v92, s[{sSEG}:{sSEG+3}], s{sTMP+2} offen offset:384')
    I(f'v_cmp_lt_u32 vcc, {CAP}, v102')
    I('s_and_saveexec_b64 s[96:97], vcc')
    I(f'ds_write_b32 v100, v{vONE} offset:{L_MISC+12}')
    I('s_mov_b64 exec, s[96:97]')
    I('s_waitcnt vmcnt(0)')
    lab('k2_noline3')
    I('s_branch k2_atomics')

    lab('k2_scanload')
    srd(sSEG, 10, 0, E * 4)
    srd(sCN, 8, 0, E * 4)
    srd(sCW, 6, 0, E * 2)
    I('v_lshlrev_b32 v101, 4, v0')
    I('v_lshlrev_b32 v102, 3, v0')
    I(f's_lshl_b32 s{sTMP}, s{sBATCH}, 2')
    I(f's_lshl_b32 s{sTMP+1}, s{sBATCH}, 1')
    I(f'buffer_load_dwordx4 v[32:35], v101, s[{sSEG}:{sSEG+3}], s{sTMP} offen')
    I(f'buffer_load_dwordx4 v[36:39], v101, s[{sCN}:{sCN+3}], s{sTMP} offen')
    I(f'buffer_load_dwordx2 v[40:41], v102, s[{sCW}:{sCW+3}], s{sTMP+1} offen')
    I(f'v_lshl_add_u32 v103, v0, 2, s{sBATCH}')
    I(f'v_cmp_gt_u32 vcc, {E}, v103')
    I(f's_mov_b32 s{sTMP}, {NB}')
    for q in range(4, 16):
        I(f's_mov_b64 s[{sMASK+2*q}:{sMASK+2*q+1}], 0')
    I('s_waitcnt vmcnt(0) lgkmcnt(0)')
    I('s_barrier')
    for j in range(4):
        m = sMASK + 2 * j
        I(f'v_subrev_u32 v{32+j}, s{sN0}, v{32+j}')
        I(f'v_cmp_gt_u32 s[{m}:{m+1}], s{sTMP}, v{32+j}')
        I(f'v_lshlrev_b32 v{36+j}, 7, v{36+j}')
        I(f'v_lshl_or_b32 v{REC+2*j}, v{32+j}, 24, v{36+j}')
        if j % 2 == 0:
            I(f'v_lshlrev_b32 v{REC+2*j+1}, 16, v{40+j//2}')
        else:
            I(f'v_and_b32 v{REC+2*j+1}, 0xffff0000, v{40+j//2}')
        I(f's_and_b64 s[{m}:{m+1}], s[{m}:{m+1}], vcc')

    lab('k2_atomics')
    for q in range(16):
        m = sMASK + 2 * q
        if q % 2 == 0 and q < 12:
            I(f's_waitcnt vmcnt({10 - q//2})')
        if q == 8 or q == 12:
            I(f's_or_b64 s[96:97], s[{m}:{m+1}], s[{m+4}:{m+5}]')
            I('s_cbranch_scc0 k2_atom_done')
        I(f's_mov_b64 exec, s[{m}:{m+1}]')
        I(f'v_lshrrev_b32 v{AA+q}, 22, v{REC+2*q}')
        I(f'ds_add_rtn_u32 v{RK+q}, v{AA+q}, v{vONE} offset:{L_CNT}')
    lab('k2_atom_done')
    I('s_mov_b64 exec, -1')
    stamp(2)
    I(f's_cmp_lg_u32 s{sBATCH}, 0')
    I('s_cbranch_scc1 k2_nostage')
    I('s_waitcnt vmcnt(1)')
    I(f'ds_write_b128 v97, {vr(XST,4)} offset:{L_P}')
    I(f'ds_write_b128 v97, {vr(XST+4,4)} offset:{L_P+16384}')
    I(f'ds_write_b64 v98, {vr(WST,2)}')
    I(f's_mov_b32 s{sTMP}, {NLOG2E:#x}')
    I(f'v_lshlrev_b32 v{vC}, 16, v{CRAW}')
    I(f'v_and_b32 v{vC+1}, 0xffff0000, v{CRAW}')
    I(f'v_lshlrev_b32 v{vC+2}, 16, v{CRAW+1}')
    I(f'v_and_b32 v{vC+3}, 0xffff0000, v{CRAW+1}')
    for j in range(4):
        I(f'v_mul_f32 v{vC+j}, s{sTMP}, v{vC+j}')
    lab('k2_nostage')
    I('s_waitcnt lgkmcnt(0)')
    I('s_barrier')
    stamp(3)
    A, BF, D = 80, 96, 112
    I(f's_cmp_lt_u32 s{sWAVE}, 4')
    I('s_cbranch_scc1 k2_scan1')
    I(f's_cmp_lt_u32 s{sWAVE}, 9')
    I('s_cbranch_scc1 k2_bar3')
    I(f's_cmp_lg_u32 s{sBATCH}, 0')
    I('s_cbranch_scc1 k2_bar3')
    I(f's_sub_u32 s{sTMP}, s{sWAVE}, 9')
    I(f's_lshl_b32 s{sTMP}, s{sTMP}, 12')
    I('v_and_b32 v10, 31, v0')
    I('v_bfe_u32 v11, v0, 5, 1')
    I('v_bfe_u32 v12, v0, 1, 3')
    I('v_xor_b32 v12, v12, v11')
    I('v_lshlrev_b32 v12, 4, v12')
    I('v_lshl_add_u32 v12, v10, 7, v12')
    I(f'v_add_u32 v12, s{sTMP}, v12')
    I(f'ds_read_b128 {vr(A,4)}, v12 offset:{L_P}')
    I('v_xor_b32 v13, 32, v12')
    I(f'ds_read_b128 {vr(A+4,4)}, v13 offset:{L_P}')
    I('v_xor_b32 v13, 64, v12')
    I(f'ds_read_b128 {vr(A+8,4)}, v13 offset:{L_P}')
    I('v_xor_b32 v13, 0x60, v12')
    I(f'ds_read_b128 {vr(A+12,4)}, v13 offset:{L_P}')
    I('v_bfe_u32 v12, v0, 2, 2')
    I('v_lshl_add_u32 v12, v11, 3, v12')
    I('v_lshlrev_b32 v12, 6, v12')
    I('v_bfe_u32 v13, v0, 4, 1')
    I('v_lshl_add_u32 v12, v13, 5, v12')
    I('v_and_b32 v13, 3, v0')
    I('v_lshl_add_u32 v12, v13, 3, v12')
    I(f'v_add_u32 v12, {L_W}, v12')
    I('v_lshlrev_b32 v10, 2, v10')
    I('v_lshl_add_u32 v10, v11, 9, v10')
    I(f'v_add_u32 v10, s{sTMP}, v10')
    I(f's_mov_b32 s{sTMP+1}, {NLOG2E:#x}')
    node_mfma(0, A, BF, D, 12)
    for r in range(16):
        I(f'v_mul_f32 v{D+r}, s{sTMP+1}, v{D+r}')
        I(f'ds_write_b32 v10, v{D+r} offset:{L_P + (8*(r//4) + r%4)*128}')
    I('s_branch k2_bar3')
    lab('k2_scan1')
    I(f'ds_read_b32 v80, v99 offset:{L_CNT}')
    I('s_mov_b32 s96, 0x01010101')
    I('s_mov_b32 s97, 0x00010101')
    I('s_waitcnt lgkmcnt(0)')
    I('v_lshrrev_b32 v81, 3, v80')
    I('v_and_b32 v82, 7, v80')
    I('v_lshlrev_b32 v82, 3, v82')
    I('v_sub_u32 v83, 56, v82')
    I('v_lshrrev_b64 v[84:85], v83, s[96:97]')
    I(f'ds_add_rtn_u32 v88, v100, v81 offset:{L_MISC+8}')
    I(f'ds_add_rtn_u64 v[86:87], v100, v[84:85] offset:{L_MISC}')
    lab('k2_bar3')
    I('s_waitcnt lgkmcnt(0)')
    I('s_barrier')
    stamp(4)
    I('v_mov_b32 v107, 0')
    I(f'ds_read_b128 v[108:111], v107 offset:{L_MISC}')
    I('s_waitcnt lgkmcnt(0)')
    I(f'v_readfirstlane_b32 s{sY}, v108')
    I(f'v_readfirstlane_b32 s{sY+1}, v109')
    I(f'v_readfirstlane_b32 s{sTOTF}, v110')
    I(f'v_readfirstlane_b32 s{sTMP}, v111')
    I(f's_and_b32 s{sGTOT}, s{sY}, 0xff')
    I(f's_add_u32 s{sGTOT}, s{sGTOT}, s{sTOTF}')
    I(f's_cmp_gt_u32 s{sGTOT}, {CHMAX}')
    I(f's_cselect_b32 s{sTMP}, 1, s{sTMP}')
    I(f's_cmp_lg_u32 s{sTMP}, 0')
    I('s_cbranch_scc1 k2_toscan')
    I(f's_add_u32 s{sGTOT}, s{sGTOT}, 7')
    I(f's_lshr_b32 s{sGTOT}, s{sGTOT}, 3')
    I(f's_add_u32 s{sGF8}, s{sTOTF}, 7')
    I(f's_lshr_b32 s{sGF8}, s{sGF8}, 3')
    I(f's_cmp_lt_u32 s{sWAVE}, 4')
    I('s_cbranch_scc1 k2_scan2')
    I(f's_cmp_lt_u32 s{sWAVE}, 9')
    I('s_cbranch_scc1 k2_bar4')
    I(f's_cmp_lg_u32 s{sBATCH}, 0')
    I('s_cbranch_scc1 k2_bar4')
    node_mfma(4096, A, BF, D, 12)
    for r in range(16):
        I(f'ds_write_b32 v10, v{D+r} offset:{L_ACC + (8*(r//4) + r%4)*128}')
    I('s_branch k2_bar4')
    lab('k2_scan2')
    I('v_subrev_u32 v83, 8, v82')
    I('v_lshrrev_b64 v[86:87], v83, v[86:87]')
    I(f'v_lshrrev_b64 v[84:85], v82, s[{sY}:{sY+1}]')
    I('v_sub_u32_sdwa v86, v86, v86 dst_sel:DWORD dst_unused:UNUSED_PAD src0_sel:BYTE_0 src1_sel:BYTE_1')
    I('v_add_u32_sdwa v86, v86, v84 dst_sel:DWORD dst_unused:UNUSED_PAD src0_sel:DWORD src1_sel:BYTE_0')
    I(f'v_add_u32 v86, s{sTOTF}, v86')
    I('v_sub_u32 v86, v86, v81')
    I('v_lshlrev_b32 v85, 6, v86')
    I('v_lshlrev_b32 v84, 6, v88')
    I('v_and_b32 v84, 0xffff, v84')
    I('v_lshl_or_b32 v84, v81, 19, v84')
    I('v_lshlrev_b32 v83, 3, v0')
    I(f'ds_write_b64 v83, v[84:85] offset:{L_INFO}')
    lab('k2_bar4')
    I('s_waitcnt lgkmcnt(0)')
    I('s_barrier')
    stamp(5)
    INF = 80
    for blk, (q0, q1) in enumerate([(0, 8), (8, 12), (12, 16)]):
        if q0:
            m = sMASK + 2 * q0
            I(f's_or_b64 s[96:97], s[{m}:{m+1}], s[{m+4}:{m+5}]')
            I('s_cbranch_scc0 k2_scat_done')
        for q in range(q0, q1):
            m = sMASK + 2 * q
            I(f's_mov_b64 exec, s[{m}:{m+1}]')
            I(f'v_lshlrev_b32 v{AA+q}, 1, v{AA+q}')
            I(f'ds_read_b64 {vr(INF+2*q,2)}, v{AA+q} offset:{L_INFO}')
        for q in range(q0, q1):
            m = sMASK + 2 * q
            I(f's_mov_b64 exec, s[{m}:{m+1}]')
            I(f's_waitcnt lgkmcnt({q1 - q0 - 1})')
            I(f'v_cmp_lt_u32_sdwa vcc, v{RK+q}, v{INF+2*q} src0_sel:DWORD src1_sel:WORD_1')
            I('s_nop 1')
            I(f'v_cndmask_b32_sdwa v{INF+2*q}, v{INF+2*q+1}, v{INF+2*q}, vcc dst_sel:DWORD dst_unused:UNUSED_PAD src0_sel:DWORD src1_sel:WORD_0')
            I(f'v_lshl_add_u32 v{INF+2*q}, v{RK+q}, 3, v{INF+2*q}')
            I(f'ds_write_b64 v{INF+2*q}, {vr(REC+2*q,2)} offset:{L_REC}')
    lab('k2_scat_done')
    I('s_mov_b64 exec, -1')
    I(f'v_bfe_u32 v{vRA}, v0, 3, 7')
    I(f'v_lshlrev_b32 v{vRA}, 6, v{vRA}')
    I(f's_mov_b32 s{sG}, s{sWAVE}')
    nsteps(sNCUR, sG)
    I('s_waitcnt vmcnt(0) lgkmcnt(0)')
    I('s_barrier')
    stamp(6)
    I(f's_cmp_ge_u32 s{sG}, s{sGTOT}')
    I('s_cbranch_scc1 k2_main_done')
    for q in range(4):
        I(f'ds_read_b128 {vr(vR[0]+4*q,4)}, v{vRA} offset:{L_REC + 16*q}')
    I(f'v_add_u32 v{vRA}, 0x2000, v{vRA}')
    for q in range(4):
        I(f'ds_read_b128 {vr(vR[1]+4*q,4)}, v{vRA} offset:{L_REC + 16*q}')
    for t in range(8):
        if t % 2 == 0:
            I(f's_waitcnt lgkmcnt({7 - t//2})')
        issue_load(t, 0, t % 2)
    next_node_addr(0)
    I('s_waitcnt lgkmcnt(0)')
    I(f's_bitcmp1_b32 s{sMODE}, 1')
    I('s_cbranch_scc1 k2_safe0')
    for cur in range(2):
        lab(f'k2_top{cur}')
        I(f's_add_u32 s{sG}, s{sG}, 16')
        I(f's_cmp_ge_u32 s{sG}, s{sGF8}')
        I(f's_cbranch_scc1 k2_gen{cur}')
        body_v1(cur)
        if cur == 1:
            I('s_branch k2_top0')
    for cur in range(2):
        lab(f'k2_gtop{cur}')
        I(f's_add_u32 s{sG}, s{sG}, 16')
        lab(f'k2_gen{cur}')
        nsteps(sNNXT, sG)
        body_v2(cur, False, f'k2_g{cur}')
        I(f's_mov_b32 s{sNCUR}, s{sNNXT}')
        I(f's_cmp_eq_u32 s{sNNXT}, 0')
        I('s_cbranch_scc1 k2_main_done')
        if cur == 1:
            I('s_branch k2_gtop0')
    for cur in range(2):
        lab(f'k2_safe{cur}')
        I(f's_add_u32 s{sG}, s{sG}, 16')
        nsteps(sNNXT, sG)
        body_v2(cur, True, f'k2_s{cur}')
        I(f's_mov_b32 s{sNCUR}, s{sNNXT}')
        I(f's_cmp_eq_u32 s{sNNXT}, 0')
        I('s_cbranch_scc1 k2_main_done')
        if cur == 1:
            I('s_branch k2_safe0')
    lab('k2_main_done')
    stamp(7)
    I(f's_bitcmp1_b32 s{sMODE}, 0')
    I('s_cbranch_scc0 k2_final')
    I(f's_add_u32 s{sBATCH}, s{sBATCH}, 4096')
    I(f's_cmp_ge_u32 s{sBATCH}, {E}')
    I('s_cbranch_scc1 k2_final')
    I('s_waitcnt vmcnt(0) lgkmcnt(0)')
    I('s_barrier')
    I('s_branch k2_batch')

    lab('k2_toscan')
    I(f's_or_b32 s{sMODE}, s{sMODE}, 1')
    I('s_waitcnt vmcnt(0) lgkmcnt(0)')
    I('s_barrier')
    I('s_branch k2_restart')

    lab('k2_final')
    I(f'v_add_f32 v10, v{vCHK}, v{vCHK+1}')
    I('v_mov_b32 v11, 0x207')
    I('v_mov_b32 v14, 0')
    I('v_cmp_class_f32 vcc, v10, v11')
    I('s_and_saveexec_b64 s[96:97], vcc')
    I(f'ds_write_b32 v14, v{vONE} offset:{L_MISC+16}')
    I('s_mov_b64 exec, -1')
    srd(sOUT, 18, 0, XBYTES)
    I('v_lshlrev_b32 v10, 5, v0')
    I('v_lshrrev_b32 v11, 2, v0')
    I('v_and_b32 v12, 3, v0')
    I('v_lshlrev_b32 v12, 4, v12')
    I('v_lshl_add_u32 v11, v11, 7, v12')
    I(f's_lshl_b32 s{sTMP}, s{sN0}, 7')
    I(f's_and_b32 s{sTMP+1}, s2, 1')
    I(f's_lshl_b32 s{sTMP+1}, s{sTMP+1}, 6')
    I(f's_add_u32 s{sTMP}, s{sTMP}, s{sTMP+1}')
    I(f'v_add_u32 v11, s{sTMP}, v11')
    I(f's_mov_b32 s{sTMP+1}, {NLOG2E:#x}')
    I('s_waitcnt vmcnt(0) lgkmcnt(0)')
    I('s_barrier')
    stamp(8)
    I(f'ds_read_b32 v13, v14 offset:{L_MISC+16}')
    I(f'ds_read_b128 v[16:19], v10 offset:{L_ACC}')
    I(f'ds_read_b128 v[20:23], v10 offset:{L_ACC+16}')
    I('s_waitcnt lgkmcnt(2)')
    I(f'v_readfirstlane_b32 s{sTMP+2}, v13')
    I(f'v_cmp_gt_u32 vcc, {NB*4}, v0')
    I(f's_cmp_lg_u32 s{sTMP+2}, 0')
    I('s_cbranch_scc1 k2_redo')
    I('s_and_b64 exec, exec, vcc')
    I('s_cbranch_execz k2_fin')
    I('s_waitcnt lgkmcnt(0)')
    for j in range(8):
        I(f'v_mul_f32 v{24+j}, s{sTMP+1}, v{16+j}')
    for j in range(8):
        I(f'v_exp_f32 v{24+j}, v{24+j}')
    for j in range(8):
        I(f'v_add_f32 v{24+j}, 1.0, v{24+j}')
    for j in range(8):
        I(f'v_rcp_f32 v{24+j}, v{24+j}')
    for j in range(8):
        I(f'v_mul_f32 v{16+j}, v{16+j}, v{24+j}')
    for j in range(4):
        I(f'v_cvt_pk_bf16_f32 v{16+j}, v{16+2*j}, v{17+2*j}')
    I(f'buffer_store_dwordx4 v[16:19], v11, s[{sOUT}:{sOUT+3}], 0 offen')
    lab('k2_fin')
    if DIAG:
        I('s_mov_b64 exec, -1')
        stamp(9)
        I('s_waitcnt vmcnt(0)')
        stamp(10)
        stamp_store(1, 20, 's2', 16, sOUT)
    lab('k2_end')
    I('s_endpgm')
    lab('k2_redo')
    I(f's_or_b32 s{sMODE}, s{sMODE}, 2')
    I('s_waitcnt lgkmcnt(0)')
    I('s_barrier')
    I('s_branch k2_restart')

def kd(name, vgpr, sgpr, extra=''):
    emit('.p2align 6')
    emit(f'.amdhsa_kernel {name}')
    emit(f'  .amdhsa_next_free_vgpr {vgpr}')
    emit(f'  .amdhsa_next_free_sgpr {sgpr}')
    emit(f'  .amdhsa_accum_offset {(vgpr + 3) // 4 * 4}')
    emit('  .amdhsa_group_segment_fixed_size 0')
    emit('  .amdhsa_kernarg_size 80')
    emit('  .amdhsa_user_sgpr_count 2')
    emit('  .amdhsa_user_sgpr_kernarg_segment_ptr 1')
    emit('  .amdhsa_system_sgpr_workgroup_id_x 1')
    if extra:
        emit(extra)
    emit('.end_amdhsa_kernel')

emit(header.rstrip())
emit(f'; @launch kernel=bin_kernel grid=({EW+NW},1,1) block=(512,1,1) lds={K1_LDS}')
emit(f'; @launch kernel=agg_kernel grid=({2*NBK},1,1) block=(1024,1,1) lds={K2_LDS}')
emit('.amdgcn_target "amdgcn-amd-amdhsa--gfx950"')
emit('.text')
gen_k1()
gen_k2()
emit('.section .rodata,"a"')
kd('bin_kernel', 96, 102, '  .amdhsa_fp16_overflow 1')
kd('agg_kernel', 128, 102)
open(OUT, 'w').write('\n'.join(L) + '\n')
print('wrote', OUT, len(L), 'lines')
```

```python
import sys
src, dst, M = sys.argv[1], sys.argv[2], int(sys.argv[3])
A = sys.argv[4:10]; B = sys.argv[10:16]
s = open(src).read()
lines = s.split('\n')
last = max(i for i,l in enumerate(lines) if l.startswith('; @launch kernel='))
lines.insert(last+1, '; @launch kernel=probe_kernel grid=(1,1,1) block=(64,1,1) lds=0')
s = '\n'.join(lines)
def red(tag, spec, dstv):
    k, w0, w1, idx, op = int(spec[0]), int(spec[1]), int(spec[2]), int(spec[4]), spec[5]
    lo, nw = (map(int, spec[3].split(':')) if ':' in spec[3] else (0, int(spec[3])))
    o = f'''
    v_and_b32 v1, 15, v0
    v_min_u32 v1, {nw-1}, v1
    v_max_u32 v1, {lo}, v1
    v_lshlrev_b32 v1, 6, v1
    v_lshrrev_b32 v2, 4, v0
    v_mov_b32 v{dstv}, {'-1' if op=='min' else '0'}
    s_mov_b32 s10, {w0}
pr_{tag}:
    v_add_u32 v3, s10, v2
    v_min_u32 v3, {w1-1}, v3
    v_lshl_add_u32 v3, v3, 10, v1
    v_add_u32 v3, {k*0x100000 + idx*4}, v3
    buffer_load_dword v4, v3, s[12:15], 0 offen
    s_waitcnt vmcnt(0)
    v_{op}_u32 v{dstv}, v{dstv}, v4
    s_add_u32 s10, s10, 4
    s_cmp_lt_u32 s10, {w1}
    s_cbranch_scc1 pr_{tag}
    s_mov_b32 s10, 0
    s_mov_b32 s{20+dstv}, {'-1' if op=='min' else '0'}
pr2_{tag}:
    s_nop 4
    v_readlane_b32 s11, v{dstv}, s10
    s_nop 4
    s_{op}_u32 s{20+dstv}, s{20+dstv}, s11
    s_add_u32 s10, s10, 1
    s_cmp_lt_u32 s10, 64
    s_cbranch_scc1 pr2_{tag}
'''
    return o
code = f'''.globl probe_kernel
.p2align 8
.type probe_kernel,@function
probe_kernel:
    s_cmp_ge_u32 s2, 1
    s_cbranch_scc1 pr_end
    s_load_dwordx2 s[4:5], s[0:1], 72
    s_waitcnt lgkmcnt(0)
    s_add_u32 s12, s4, 0x4000000
    s_addc_u32 s13, s5, 0
    s_mov_b32 s14, 0x200000
    s_mov_b32 s15, 0x20000
{red('a', A, 8)}
{red('b', B, 9)}
    s_sub_u32 s30, s29, s28
    s_min_u32 s30, s30, 20000
    s_mul_i32 s30, s30, {M}
    s_memrealtime s[32:33]
    s_waitcnt lgkmcnt(0)
pr_spin:
    s_memrealtime s[34:35]
    s_waitcnt lgkmcnt(0)
    s_sub_u32 s36, s34, s32
    s_cmp_lt_u32 s36, s30
    s_cbranch_scc1 pr_spin
pr_end:
    s_endpgm
.section .rodata,"a"'''
s = s.replace('.section .rodata,"a"', code)
s += """.p2align 6
.amdhsa_kernel probe_kernel
  .amdhsa_next_free_vgpr 16
  .amdhsa_next_free_sgpr 48
  .amdhsa_accum_offset 16
  .amdhsa_group_segment_fixed_size 0
  .amdhsa_kernarg_size 80
  .amdhsa_user_sgpr_count 2
  .amdhsa_user_sgpr_kernarg_segment_ptr 1
  .amdhsa_system_sgpr_workgroup_id_x 1
.end_amdhsa_kernel
"""
open(dst,'w').write(s)
```

```python
import sys
src, dst = sys.argv[1], sys.argv[2]
specs = ['0:16,0,min'] + sys.argv[3:]
s = open(src).read()
lines = s.split('\n')
last = max(i for i,l in enumerate(lines) if l.startswith('; @launch kernel='))
lines.insert(last+1, '; @launch kernel=probe_kernel grid=(1,1,1) block=(64,1,1) lds=0')
s = '\n'.join(lines)
def red(n, spec):
    w, idx, op = spec.split(','); lo, hi = map(int, w.split(':')); idx = int(idx)
    avg = op == 'avg'
    init = '-1' if op == 'min' else '0'
    vop = 'add' if avg else op
    nl = hi - lo
    return f'''
    v_and_b32 v1, 15, v0
    v_min_u32 v1, {hi-1}, v1
    v_max_u32 v1, {lo}, v1
    v_lshlrev_b32 v1, 6, v1
    v_lshrrev_b32 v2, 4, v0
    v_mov_b32 v8, {init}
    s_mov_b32 s10, 0
pr_{n}:
    v_add_u32 v3, s10, v2
    v_min_u32 v3, 254, v3
    v_lshl_add_u32 v3, v3, 10, v1
    v_add_u32 v3, {0x100000 + idx*4}, v3
    buffer_load_dword v4, v3, s[12:15], 0 offen
    s_waitcnt vmcnt(0)
    v_subrev_u32 v4, s28, v4
    v_{vop}_u32 v8, v8, v4
    s_add_u32 s10, s10, 4
    s_cmp_lt_u32 s10, 256
    s_cbranch_scc1 pr_{n}
    s_mov_b32 s10, 0
    s_mov_b32 s29, {init}
pr2_{n}:
    s_nop 4
    v_readlane_b32 s11, v8, s10
    s_nop 4
    s_{vop}_u32 s29, s29, s11
    s_add_u32 s10, s10, 1
    s_cmp_lt_u32 s10, 64
    s_cbranch_scc1 pr2_{n}
    {'s_lshr_b32 s29, s29, 12' if avg else ''}
    {'s_mov_b32 s28, s29' if n == 0 else f'v_writelane_b32 v9, s29, {n-1}'}
'''
code = f'''.globl probe_kernel
.p2align 8
.type probe_kernel,@function
probe_kernel:
    s_cmp_ge_u32 s2, 1
    s_cbranch_scc1 pr_end
    s_load_dwordx2 s[4:5], s[0:1], 72
    s_load_dwordx2 s[6:7], s[0:1], 64
    s_waitcnt lgkmcnt(0)
    s_add_u32 s12, s4, 0x4000000
    s_addc_u32 s13, s5, 0
    s_mov_b32 s14, 0x200000
    s_mov_b32 s15, 0x20000
    s_sub_u32 s16, s6, 0
    s_subb_u32 s17, s7, 0
    s_mov_b32 s18, 64
    s_mov_b32 s19, 0x20000
    s_mov_b32 s28, 0
    v_mov_b32 v9, 0
{''.join(red(i, sp) for i, sp in enumerate(specs))}
    v_lshlrev_b32 v1, 2, v0
    buffer_store_dword v9, v1, s[16:19], 0 offen
pr_end:
    s_endpgm
.section .rodata,"a"'''
s = s.replace('.section .rodata,"a"', code)
s += """.p2align 6
.amdhsa_kernel probe_kernel
  .amdhsa_next_free_vgpr 16
  .amdhsa_next_free_sgpr 48
  .amdhsa_accum_offset 16
  .amdhsa_group_segment_fixed_size 0
  .amdhsa_kernarg_size 80
  .amdhsa_user_sgpr_count 2
  .amdhsa_user_sgpr_kernarg_segment_ptr 1
  .amdhsa_system_sgpr_workgroup_id_x 1
.end_amdhsa_kernel
"""
open(dst,'w').write(s)
```
